```python
import torch

def _softmax(x, axis=-1):
    return torch.softmax(x, dim=axis)
def _gelu(x):
    return torch.nn.functional.gelu(x, approximate="tanh")
def _silu(x):
    return torch.nn.functional.silu(x)
def _sigmoid(x):
    return torch.sigmoid(x)
def _layernorm(x, axis=-1, eps=1e-5):
    m = x.mean(dim=axis, keepdim=True)
    v = x.var(dim=axis, keepdim=True, unbiased=False)
    return (x - m) / torch.sqrt(v + eps)
def _scatter_add(tgt, idx, src, axis=0):
    return tgt.clone().index_add_(axis, idx, src)
def _segment_sum(src, seg, n):
    out = torch.zeros((n,) + src.shape[1:], dtype=src.dtype)
    return out.index_add_(0, seg, src)
def _pad(x, pw):
    flat = tuple(v for pair in reversed(pw) for v in pair)
    return torch.nn.functional.pad(x, flat)

kernel_name = 'gated_mix__linear_attn_block__spectral_gfnet__prompt'

def setup_inputs():

    _w = (lambda a: (lambda t: t.to(torch.bfloat16) if t.is_floating_point() else t)(torch.as_tensor(a)))
    def _A_setup():
        B, S, D = 1, 2048, 640
        return {
            "x": _w((lambda *s: torch.randn(*s, dtype=torch.bfloat16) * 0.05)(B, S, D)),
            "wqkv": _w((lambda *s: torch.randn(*s, dtype=torch.bfloat16) * 0.4)(D, 3 * D)),
            "wo": _w((lambda *s: torch.randn(*s, dtype=torch.bfloat16) * 0.05)(D, D)),
        }
    _A_in = _A_setup()

    def _B_setup():
        B, S, D = 1, 2048, 640
        Df = D // 2 + 1
        return {
            "x": _w((lambda *s: torch.randn(*s, dtype=torch.bfloat16) * 0.05)(B, S, D)),
            "w_r": _w((lambda *s: torch.randn(*s, dtype=torch.bfloat16) * 1.6)(S, Df) * 0.02),
            "w_i": _w((lambda *s: torch.randn(*s, dtype=torch.bfloat16) * 1.6)(S, Df) * 0.02),
        }
    _B_in = _B_setup()

    return {
        "A_x": _A_in["x"],
        "A_wqkv": _A_in["wqkv"],
        "A_wo": _A_in["wo"],
        "B_x": _B_in["x"],
        "B_w_r": _B_in["w_r"],
        "B_w_i": _B_in["w_i"],
        "gate_w": _w((lambda *s: torch.randn(*s, dtype=torch.bfloat16) * 0.05)(640) * 16.0),
    }

def reference(A_x, A_wqkv, A_wo, B_x, B_w_r, B_w_i, gate_w):
    def _A_ref(x, wqkv, wo):
        B, S, D = x.shape
        H = 32; Dh = D // H
        qkv = (lambda x, *d: x.permute(*d))((x @ wqkv).reshape(B, S, 3, H, Dh), 2, 0, 3, 1, 4)
        q, k, v = qkv[0], qkv[1], qkv[2]
        phi = lambda t: torch.where(t > 0, t + 1, torch.exp(t)) + 1e-6
        pq, pk = phi(q), phi(k)
        kv = torch.einsum("bhsd,bhse->bhde", pk, v)
        z = torch.einsum("bhsd->bhd", pk)
        num = torch.einsum("bhqd,bhde->bhqe", pq, kv)
        den = torch.einsum("bhqd,bhd->bhq", pq, z)[..., None] + 1e-6
        o = num / den
        return (lambda x, *d: x.permute(*d))(o, 0, 2, 1, 3).reshape(B, S, D) @ wo

    def _B_ref(x, w_r, w_i):
        B, S, D = x.shape
        X = (lambda x, axes=(-2,-1): torch.fft.rfft2(x.float(), dim=axes))(x, axes=(-2, -1))
        W = w_r + 1j * w_i
        X = X * W
        y = (lambda x, s, axes=(-2,-1): torch.fft.irfft2(x, s=s, dim=axes).to(torch.bfloat16))(X, (S, D), axes=(-2, -1))
        return y

    x = A_x
    g = _sigmoid((x * gate_w).sum(-1, keepdims=True))
    a = _A_ref(x, A_wqkv, A_wo)
    b = _B_ref(x, B_w_r, B_w_i)
    return g * a + (1 - g) * b
```

```python
import re, struct

REG_RE = re.compile(r"\b([vas])(\d+)\b|\b([vas])\[(\d+):(\d+)\]|\b(vcc|exec|m0|scc)\b")
TRANS = ("v_exp_f32", "v_log_f32", "v_rcp_f32", "v_rsq_f32", "v_sqrt_f32", "v_sin_f32", "v_cos_f32")


def regs_of(tok):
    out = []
    for m in REG_RE.finditer(tok):
        if m.group(1):
            out.append((m.group(1), int(m.group(2))))
        elif m.group(3):
            out += [(m.group(3), i) for i in range(int(m.group(4)), int(m.group(5)) + 1)]
        else:
            out.append((m.group(6), 0))
    return out


def fbits(x):
    return struct.unpack("<I", struct.pack("<f", x))[0]


def fhex(x):
    return "0x%08x" % fbits(x)


class Ins:
    __slots__ = ("text", "op", "kind", "dst", "src", "srcc", "states")

    def __init__(self, text):
        self.text = text
        t = text.split(";")[0].strip()
        self.dst, self.src, self.srcc = [], [], []
        self.states = 1
        if t.endswith(":") or t.startswith(".") or not t:
            self.op, self.kind, self.states = t, "label", 0
            return
        sp = t.split(None, 1)
        op = sp[0]
        self.op = op
        rest = sp[1] if len(sp) > 1 else ""
        ops = [o.strip() for o in rest.split(",")] if rest else []
        if op.startswith("v_mfma"):
            self.kind = "mfma"
            self.dst = regs_of(ops[0])
            self.src = regs_of(ops[1]) + regs_of(ops[2])
            self.srcc = regs_of(ops[3].split()[0])
        elif op.startswith("v_"):
            self.kind = "valu"
            self.dst = regs_of(ops[0])
            for o in ops[1:]:
                self.src += regs_of(o)
            if op.startswith(("v_fmac", "v_mac", "v_pk_fmac")) or "d16" in op or "dpp" in rest or "row_" in rest or "quad_perm" in rest:
                self.src += self.dst
            if op.startswith("v_cndmask") and len(ops) == 3:
                self.src.append(("vcc", 0))
            if op.startswith(("v_permlane16_swap", "v_permlane32_swap", "v_swap")):
                self.dst = regs_of(ops[0]) + regs_of(ops[1])
                self.src = list(self.dst)
        elif op.startswith(("buffer_load", "global_load")):
            self.kind = "vload"
            if re.search(r"\blds\b", rest):
                self.kind = "dma"
                for o in ops:
                    self.src += regs_of(o)
                self.src.append(("m0", 0))
            else:
                self.dst = regs_of(ops[0])
                for o in ops[1:]:
                    self.src += regs_of(o)
        elif op.startswith(("buffer_store", "global_store", "buffer_atomic", "global_atomic")):
            self.kind = "vstore"
            for o in ops:
                self.src += regs_of(o)
        elif op.startswith("ds_read") or op.startswith("ds_bpermute") or op.startswith("ds_swizzle") or op.startswith("ds_permute"):
            self.kind = "dsread"
            self.dst = regs_of(ops[0])
            for o in ops[1:]:
                self.src += regs_of(o)
        elif op.startswith("ds_"):
            self.kind = "dswrite"
            for o in ops:
                self.src += regs_of(o)
        elif op == "s_nop":
            self.kind = "nop"
            self.states = int(ops[0]) + 1
        elif op.startswith(("s_branch", "s_cbranch", "s_endpgm", "s_setpc", "s_swappc")):
            self.kind = "branch"
        elif op.startswith("s_"):
            self.kind = "salu"
            if op.startswith(("s_cmp", "s_waitcnt", "s_barrier", "s_setprio", "s_sleep", "s_bitcmp")):
                for o in ops:
                    self.src += regs_of(o)
            else:
                self.dst = regs_of(ops[0]) if ops else []
                for o in ops[1:]:
                    self.src += regs_of(o)
        else:
            raise ValueError("unknown instr: " + text)


def pad_hazards(lines):
    out = []
    hist = []
    pos = 0
    nnop = 0

    def need(ins):
        req = 0
        isv = lambda r: r[0] in ("v", "a")
        for p, h in hist:
            def gap(n):
                return p + 1 + n
            hd = set(h.dst)
            if h.kind == "mfma":
                if ins.kind == "mfma":
                    if hd & set(ins.src):
                        req = max(req, gap(8))
                    if hd & set(ins.srcc) and h.dst != ins.srcc:
                        req = max(req, gap(6))
                    if hd & set(ins.dst) and h.dst != ins.dst:
                        req = max(req, gap(6))
                elif ins.kind in ("valu", "vload", "vstore", "dsread", "dswrite", "dma"):
                    if hd & (set(ins.src) | set(ins.dst)):
                        req = max(req, gap(8))
                if ins.kind == "valu" and set(h.srcc) & set(ins.dst):
                    req = max(req, gap(3))
            elif h.kind == "valu":
                vd = {r for r in hd if isv(r)}
                sd = hd - vd
                if ins.kind == "mfma" and vd & (set(ins.src) | set(ins.srcc)):
                    req = max(req, gap(2))
                if ins.kind == "valu":
                    if h.op in TRANS and vd & set(ins.src):
                        req = max(req, gap(1))
                    if ins.op.startswith(("v_readfirstlane", "v_readlane")) and vd & set(ins.src):
                        req = max(req, gap(1))
                    if ("row_" in ins.text or "quad_perm" in ins.text or "permlane" in ins.op or "dpp" in ins.text) and vd & set(ins.src):
                        req = max(req, gap(2))
                    if sd & set(ins.src):
                        req = max(req, gap(2))
                    if ("op_sel" in h.text or "sdwa" in h.text or "dst_sel" in h.text) and vd & (set(ins.src) | set(ins.dst)):
                        req = max(req, gap(1))
                    if ("exec", 0) in sd:
                        req = max(req, gap(5))
                if ins.kind == "mfma" and ("exec", 0) in sd:
                    req = max(req, gap(4))
                if ins.kind in ("vload", "vstore", "dma") and sd & set(ins.src):
                    req = max(req, gap(5))
                if h.op in TRANS and ins.kind in ("vstore", "dswrite", "vload", "dsread", "dma") and vd & set(ins.src):
                    req = max(req, gap(1))
            elif h.kind == "vstore":
                if ("x4" in h.op or "x3" in h.op) and ins.kind in ("valu", "mfma", "vload", "dsread"):
                    data = set(regs_of(h.text.split(None, 1)[1].split(",")[0]))
                    if data & set(ins.dst):
                        req = max(req, gap(2))
            elif h.kind == "salu":
                if ("m0", 0) in hd and ins.kind == "dma":
                    req = max(req, gap(1))
        return req

    for ln in lines:
        ins = Ins(ln)
        if ins.kind == "label" and (ins.op == "" or ins.op.startswith(".")):
            out.append(ln)
            continue
        if ins.kind in ("label", "branch"):
            req = 0
            for p, h in hist:
                if h.kind == "mfma":
                    req = max(req, p + 1 + 8)
                elif h.kind == "valu":
                    req = max(req, p + 1 + (5 if any(r[0] not in "va" for r in h.dst) else 2))
                elif h.kind == "vstore":
                    req = max(req, p + 1 + 2)
                elif h.kind == "salu" and ("m0", 0) in h.dst:
                    req = max(req, p + 1 + 1)
            if ins.op != "s_endpgm" and not ins.op.startswith(".") and req > pos:
                n = req - pos
                out.append("s_nop %d" % (n - 1))
                pos += n
                nnop += 1
            out.append(ln)
            pos += ins.states
            if ins.kind == "branch" or ins.op.endswith(":"):
                hist = []
            continue
        req = need(ins)
        if req > pos:
            n = req - pos
            out.append("s_nop %d" % (n - 1))
            pos += n
            nnop += 1
        out.append(ln)
        hist.append((pos, ins))
        pos += ins.states
        hist = [(p, h) for p, h in hist if pos - p <= 12]
    return out, nnop


class Asm:
    def __init__(self):
        self.lines = []
        self.vm = []
        self.lg = []

    def I(self, s, tag=None):
        self.lines.append(s)
        op = s.split()[0]
        if op.startswith(("buffer_", "global_")):
            self.vm.append(tag)
        elif op.startswith("ds_"):
            self.lg.append(tag)

    def L(self, name):
        self.lines.append(name + ":")

    def C(self, s):
        self.lines.append("; " + s)

    def _n(self, lst, pred):
        last = -1
        for i, t in enumerate(lst):
            if pred(t):
                last = i
        return len(lst) - 1 - last if last >= 0 else None

    def wait(self, vm=None, lg=None):
        parts = []
        if vm is not None:
            n = vm if isinstance(vm, int) else self._n(self.vm, vm)
            if n is not None:
                n = min(n, 63)
                parts.append("vmcnt(%d)" % n)
                self.vm = self.vm[len(self.vm) - n:] if n else []
        if lg is not None:
            n = lg if isinstance(lg, int) else self._n(self.lg, lg)
            if n is not None:
                n = min(n, 15)
                parts.append("lgkmcnt(%d)" % n)
                self.lg = self.lg[len(self.lg) - n:] if n else []
        if parts:
            self.lines.append("s_waitcnt " + " ".join(parts))

    def fork(self):
        a = Asm()
        a.vm, a.lg = list(self.vm), list(self.lg)
        return a

    def extend(self, other):
        self.lines += other.lines


def vr(b, n=1, k="v"):
    return "%s%d" % (k, b) if n == 1 else "%s[%d:%d]" % (k, b, b + n - 1)


def ar(b, n=1):
    return vr(b, n, "a")


def sr(b, n=1):
    return vr(b, n, "s")


def mfma(d, a, b, c):
    return "v_mfma_f32_16x16x32_bf16 %s, %s, %s, %s" % (d, a, b, c)
```

```python
from asmlib import *
from gen import WS_PQ, WS_V, WS_U, WS_M, WS_KV, WS_Z, WS_VS, WS_SC, WS_END, L2E, srd, getpc_tab, gen_T

def weave(A, mf, fill, per=2):
    for m in mf:
        A.I(m)
        for _ in range(per):
            if fill:
                A.I(fill.pop(0))

def k2():
    A = Asm()
    A.L("k2_kernel")
    A.I("s_cmp_ge_u32 s2, 321")
    A.I("s_cbranch_scc1 k2_end")
    A.I("s_load_dwordx2 s[16:17], s[0:1], 72")
    A.I("s_load_dwordx4 s[4:7], s[0:1], 32")
    A.I("s_load_dwordx2 s[8:9], s[0:1], 0")
    A.I("s_load_dwordx2 s[10:11], s[0:1], 16")
    A.I("s_load_dwordx2 s[12:13], s[0:1], 48")
    getpc_tab(A, 28, "ETAB")
    A.I("s_mov_b32 s30, 16384")
    A.I("s_mov_b32 s31, 0x00020000")
    A.I("v_and_b32 v1, 63, v0")
    A.I("v_lshrrev_b32 v8, 6, v0")
    A.I("v_lshrrev_b32 v2, 4, v1")
    A.I("v_readfirstlane_b32 s32, v8")
    A.I("v_and_b32 v3, 15, v1")
    A.I(f"s_mov_b32 s18, {WS_END}")
    A.I("s_mov_b32 s19, 0x00020000")
    A.I("s_cmp_ge_u32 s2, 289")
    A.I("s_cbranch_scc1 k2_r4")
    A.I("s_cmp_ge_u32 s2, 161")
    A.I("s_cbranch_scc1 k2_r3")
    A.I("s_cmp_eq_u32 s2, 160")
    A.I("s_cbranch_scc1 k2_r2")

    E = lambda t4, ks, part: 16 + ((t4 * 2 + ks) * 2 + part) * 4
    WR, WI, VR, VI, NVR, XR, XI, WR2, WI2, PR, PI, NPI, UA = 80, 96, 112, 120, 128, 136, 152, 168, 184, 200, 208, 216, 224

    def r1(special):
        R = A.fork()
        if special:
            R.L("k2_r2")
            R.I("s_mov_b32 s33, s32")
            R.I("s_mov_b32 s34, 0")
            R.I("s_mov_b32 s35, 0")
            R.I("v_lshlrev_b32 v4, 4, v1")
            R.I("s_lshl_b32 s36, s33, 12")
            R.I(f"s_add_u32 s36, s36, {WS_VS}")
            step = 1024
        else:
            R.I("s_and_b32 s33, s2, 3")
            R.I("s_bfe_u32 s34, s2, 0x10002")
            R.I("s_mul_i32 s34, s34, 20")
            R.I("s_lshr_b32 s35, s2, 3")
            R.I("s_add_u32 s34, s34, s35")
            R.I("s_and_b32 s35, s34, 1")
            R.I("s_lshl_b32 s35, s35, 2")
            R.I("s_add_u32 s35, s35, s32")
            R.I("s_lshr_b32 s34, s34, 1")
            R.I("v_lshrrev_b32 v4, 1, v1")
            R.I("v_lshlrev_b32 v4, 8, v4")
            R.I("v_and_b32 v8, 1, v1")
            R.I("v_lshl_add_u32 v4, v8, 4, v4")
            R.I("s_mul_i32 s36, s33, 20")
            R.I("s_add_u32 s36, s36, s34")
            R.I("s_lshl_b32 s36, s36, 15")
            R.I("s_lshl_b32 s37, s35, 5")
            R.I("s_add_u32 s36, s36, s37")
            R.I(f"s_add_u32 s36, s36, {WS_V}")
            step = 8192
        R.I("s_lshl_b32 s38, s32, 12")
        R.I("v_lshlrev_b32 v9, 4, v1")
        for k in range(1, 4):
            R.I(f"s_mov_b32 s{60+k}, {4096*k}")
        R.I("v_and_b32 v8, 3, v3")
        R.I("v_bfe_u32 v10, v3, 2, 1")
        R.I("v_lshl_add_u32 v8, v10, 4, v8")
        R.I("s_lshl_b32 s37, s33, 2")
        R.I("v_add_u32 v8, s37, v8")
        R.I("v_lshrrev_b32 v10, 3, v3")
        if special:
            R.I("v_mul_u32_u24 v10, 640, v10")
        else:
            R.I("s_lshl_b32 s37, s34, 5")
            R.I("s_lshl_b32 s39, s35, 2")
            R.I("s_add_u32 s37, s37, s39")
            R.I("v_lshl_add_u32 v10, v10, 1, s37")
        R.I("v_lshl_add_u32 v11, v2, 7, v8")
        R.I("v_mul_u32_u24 v6, 642, v11")
        R.I("v_add_u32 v6, v6, v10")
        for r in range(32 if not special else 64):
            R.I(f"v_mov_b32 v{(WR + r) if r < 32 else (WR2 + r - 32)}, 0")
        for e in range(16):
            R.I(f"s_mov_b32 s{44+e}, {(16*(e>>2)+(e&3))*20544}")
        R.I("s_waitcnt lgkmcnt(0)")
        for q in range(4):
            R.I(f"s_add_u32 m0, s38, {q*1024}")
            R.I(f"buffer_load_dwordx4 v4, s[16:19], s36 offen lds", "V")
            if q < 3:
                R.I(f"s_add_u32 s36, s36, {step}")
        for f in range(16):
            so = "0" if f < 4 else f"s{60 + f // 4}"
            R.I(f"buffer_load_dwordx4 {vr(16+4*f,4)}, v9, s[28:31], {so} offen offset:{(f%4)*1024}", ("E", f // 4))
        srd(R, 20, "s4", "s5", 1314816)
        srd(R, 24, "s6", "s7", 1314816)
        for e in range(16):
            R.I(f"buffer_load_short_d16_hi v{WR+e}, v6, s[20:23], s{44+e} offen", ("W", e // 4))
            R.I(f"buffer_load_short_d16_hi v{WI+e}, v6, s[24:27], s{44+e} offen", ("W", e // 4))
            if special:
                R.I(f"v_sub_u32 v12, {2048 - 32*(16*(e>>2)+(e&3))}, v11")
                R.I("v_and_b32 v12, 2047, v12")
                R.I("v_mad_u32_u24 v12, v12, s40, v10") if False else None
                R.I("v_mul_u32_u24 v12, 642, v12")
                R.I("v_add_u32 v12, v12, v10")
                R.I(f"buffer_load_short_d16_hi v{WR2+e}, v12, s[20:23], 0 offen", ("W", e // 4))
                R.I(f"buffer_load_short_d16_hi v{WI2+e}, v12, s[24:27], 0 offen", ("W", e // 4))
        R.I("v_mul_u32_u24 v7, 40960, v3")
        R.I("v_lshl_add_u32 v7, v2, 3, v7")
        R.I("s_lshl_b32 s36, s34, 11")
        R.I("s_lshl_b32 s37, s33, 8")
        R.I("s_add_u32 s36, s36, s37")
        R.I("s_lshl_b32 s37, s35, 5")
        R.I("s_add_u32 s36, s36, s37")
        R.I(f"s_add_u32 s36, s36, {WS_U}")
        R.I("v_lshl_add_u32 v5, v1, 3, s38")
        R.wait(vm=lambda x: x == "V")
        for ri in range(2):
            for ks in range(2):
                for u in range(2):
                    R.I(f"ds_read_b64_tr_b16 {vr((VR if ri == 0 else VI)+4*ks+2*u,2)}, v5 offset:{2048*ri+512*(2*ks+u)}", ("T", ri))
        R.wait(lg=lambda x: x == ("T", 0))
        for r in range(8):
            R.I(f"v_xor_b32 v{NVR+r}, 0x80008000, v{VR+r}")
        R.wait(lg=0)

        def fwd(t4):
            xr, xi = vr(XR + 4 * t4, 4), vr(XI + 4 * t4, 4)
            out = []
            for ks in range(2):
                out.append(mfma(xr, vr(E(t4, ks, 0), 4), vr(VR + 4 * ks, 4), "0" if ks == 0 else xr))
                out.append(mfma(xi, vr(E(t4, ks, 0), 4), vr(VI + 4 * ks, 4), "0" if ks == 0 else xi))
                out.append(mfma(xr, vr(E(t4, ks, 1), 4), vr(VI + 4 * ks, 4), xr))
                out.append(mfma(xi, vr(E(t4, ks, 1), 4), vr(NVR + 4 * ks, 4), xi))
            return out
        def filt(t4):
            o = []
            T = 12
            if special:
                for r in range(4):
                    e = 4 * t4 + r
                    o.append(f"v_add_f32 v{WR+e}, v{WR+e}, v{WR2+e}")
                    o.append(f"v_sub_f32 v{WI+e}, v{WI+e}, v{WI2+e}")
                    o.append(f"v_mul_f32 v{WR+e}, 0.5, v{WR+e}")
                    o.append(f"v_mul_f32 v{WI+e}, 0.5, v{WI+e}")
            for r in range(4):
                e = 4 * t4 + r
                o.append(f"v_mul_f32 v{T+r}, v{XI+e}, v{WI+e}")
                o.append(f"v_mul_f32 v{XI+e}, v{XI+e}, v{WR+e}")
            for r in range(4):
                e = 4 * t4 + r
                o.append(f"v_fma_f32 v{T+r}, v{XR+e}, v{WR+e}, -v{T+r}")
                o.append(f"v_fma_f32 v{XI+e}, v{XR+e}, v{WI+e}, v{XI+e}")
            pr = [T + r for r in range(4)]
            if special:
                for r in range(4):
                    e = 4 * t4 + r
                    o.append(f"v_subrev_f32_dpp v{XR+e}, v{XI+e}, v{T+r} row_ror:8 row_mask:0xf bank_mask:0xf")
                for r in range(4):
                    e = 4 * t4 + r
                    o.append(f"v_add_f32_dpp v{XI+e}, v{T+r}, v{XI+e} row_ror:8 row_mask:0xf bank_mask:0xf")
                pr = [XR + 4 * t4 + r for r in range(4)]
            b = 4 * (t4 >> 1) + 2 * (t4 & 1)
            for p in range(2):
                e = 4 * t4 + 2 * p
                o.append(f"v_cvt_pk_bf16_f32 v{PR+b+p}, v{pr[2*p]}, v{pr[2*p+1]}")
                o.append(f"v_cvt_pk_bf16_f32 v{PI+b+p}, v{XI+e}, v{XI+e+1}")
                o.append(f"v_cvt_pk_bf16_f32 v{NPI+b+p}, -v{XI+e}, -v{XI+e+1}")
            return o
        def inv(ks):
            out = []
            for t4 in range(4):
                ur, ui = vr(UA + 8 * t4, 4), vr(UA + 8 * t4 + 4, 4)
                out.append(mfma(ur, vr(PR + 4 * ks, 4), vr(E(t4, ks, 0), 4), "0" if ks == 0 else ur))
                out.append(mfma(ui, vr(PI + 4 * ks, 4), vr(E(t4, ks, 0), 4), "0" if ks == 0 else ui))
                out.append(mfma(ur, vr(NPI + 4 * ks, 4), vr(E(t4, ks, 1), 4), ur))
                out.append(mfma(ui, vr(PR + 4 * ks, 4), vr(E(t4, ks, 1), 4), ui))
            return out
        R.wait(vm=lambda x: x == ("E", 0))
        weave(R, fwd(0), [])
        for t4 in range(1, 4):
            R.wait(vm=lambda x: x == ("E", t4) or x == ("W", t4 - 1))
            m = fwd(t4)
            f = filt(t4 - 1)
            weave(R, m[:2], [])
            weave(R, m[2:], f, 3)
            for x in f:
                R.I(x)
        R.wait(vm=0)
        m = inv(0)
        f = filt(3)
        weave(R, m[:2], [])
        weave(R, m[2:], f, 2)
        for x in f:
            R.I(x)
        m = inv(1)
        if special:
            R.I("s_mov_b32 s40, -1")
            R.I("s_mov_b32 s41, 0")
        else:
            R.I("s_or_b32 s37, s34, s35")
            R.I("s_cmp_eq_u32 s37, 0")
            R.I("s_cselect_b32 s40, 0, -1")
            R.I("s_mov_b32 s41, -1")
        def ost(t4):
            o = []
            for ri in range(2):
                u = UA + 8 * t4 + 4 * ri
                o.append(f"v_cvt_pk_bf16_f32 v{XR+4*t4+2*ri}, v{u}, v{u+1}")
                o.append(f"v_cvt_pk_bf16_f32 v{XR+4*t4+2*ri+1}, v{u+2}, v{u+3}")
            return o
        weave(R, m[:8], [])
        weave(R, m[8:12], ost(0), 1)
        weave(R, m[12:], ost(1), 1)
        for x in ost(2) + ost(3):
            R.I(x)
        R.I("s_mov_b64 exec, s[40:41]")
        for t4 in range(4):
            for ri in range(2):
                R.I(f"buffer_store_dwordx2 {vr(XR+4*t4+2*ri,2)}, v7, s[16:19], s36 offen offset:{ri*1024}")
            if t4 < 3:
                R.I("s_add_u32 s36, s36, 655360")
        R.I("s_endpgm")
        return R
    A.extend(r1(False))
    A.extend(r1(True))

    R = A.fork()
    R.L("k2_r3")
    ZP, PQB, XB, GW, AD, T = 16, 80, 100, 120, 140, 150
    R.I("s_sub_u32 s33, s2, 161")
    R.I("s_lshl_b32 s34, s32, 2")
    R.I("v_add_u32 v4, s34, v2")
    R.I("v_mul_u32_u24 v5, 10, v4")
    R.I("v_lshlrev_b32 v6, 4, v3")
    for q in range(10):
        R.I(f"v_add_u32 v8, {q}, v5")
        R.I("v_lshrrev_b32 v9, 3, v8")
        R.I(f"v_lshl_add_u32 v{AD+q}, v9, 10, v6")
        R.I("v_and_b32 v9, 3, v8")
        R.I(f"v_lshl_add_u32 v{AD+q}, v9, 8, v{AD+q}")
        R.I("v_and_b32 v9, 4, v8")
        R.I(f"v_lshl_add_u32 v{AD+q}, v9, 1, v{AD+q}")
    R.I("s_mul_i32 s35, s33, 20480")
    if WS_PQ:
        R.I(f"s_add_u32 s35, s35, {WS_PQ}")
    R.I("s_and_b32 s36, s33, 1")
    R.I("s_mul_i32 s36, s36, 1310720")
    R.I("s_lshr_b32 s37, s33, 1")
    R.I("s_mul_i32 s37, s37, 1280")
    R.I("s_add_u32 s36, s36, s37")
    R.I("v_mul_u32_u24 v7, 80, v4")
    R.I("v_mul_u32_u24 v8, 81920, v3")
    R.I("v_add_u32 v8, v8, v7")
    R.I("v_lshlrev_b32 v9, 4, v0")
    R.I(f"s_mov_b32 s37, {WS_Z}")
    R.I("s_waitcnt lgkmcnt(0)")
    srd(R, 20, "s8", "s9", 2621440)
    srd(R, 24, "s12", "s13", 1280)
    for mt in range(16):
        R.I(f"buffer_load_dwordx4 {vr(ZP+4*mt,4)}, v9, s[16:19], s37 offen offset:{2560*(mt&1)}", "Z")
        if mt & 1:
            R.I("s_add_u32 s37, s37, 5120")
    for k in range(5):
        R.I(f"buffer_load_dwordx4 {vr(XB+4*k,4)}, v8, s[20:23], s36 offen offset:{16*k}", "X")
        R.I(f"buffer_load_dwordx4 {vr(GW+4*k,4)}, v7, s[24:27], 0 offen offset:{16*k}", "X")
    for q in range(10):
        R.I(f"buffer_load_dwordx2 {vr(PQB+2*q,2)}, v{AD+q}, s[16:19], s35 offen", "P")
    R.I("v_lshlrev_b32 v10, 3, v0")
    R.I("v_lshlrev_b32 v11, 6, v3")
    R.I("v_lshl_add_u32 v12, v4, 2, v11")
    R.wait(vm=lambda x: x == "Z")
    for st in (8, 4, 2, 1):
        for k in range(st):
            for h in range(2):
                a = ZP + 4 * k + 2 * h
                R.I(f"v_pk_add_f32 {vr(a,2)}, {vr(a,2)}, {vr(a+4*st,2)}")
    R.I(f"v_cvt_pk_bf16_f32 v{ZP}, v{ZP}, v{ZP+1}")
    R.I(f"v_cvt_pk_bf16_f32 v{ZP+1}, v{ZP+2}, v{ZP+3}")
    R.I(f"ds_write_b64 v10, {vr(ZP,2)} offset:1024")
    R.wait(vm=lambda x: x == "X")
    R.I(f"v_mov_b32 v{T}, 0")
    R.I(f"v_mov_b32 v{T+1}, 0")
    for k in range(20):
        R.I(f"v_dot2_f32_bf16 v{T+(k&1)}, v{XB+k}, v{GW+k}, v{T+(k&1)}")
    R.I("s_nop 2")
    R.I(f"v_add_f32 v{T}, v{T}, v{T+1}")
    R.I(f"ds_write_b32 v12, v{T}")
    R.wait(lg=0)
    R.I("s_barrier")
    for k in range(4):
        R.I(f"ds_read_b128 {vr(XB+4*k,4)}, v11 offset:{16*k}", "G")
    for k in range(5):
        R.I(f"ds_read_b128 {vr(GW+4*k,4)}, v7 offset:{1024+16*k}", "ZZ")
    R.wait(lg=lambda x: x == "G")
    for st in (8, 4, 2):
        for k in range(0, st, 2):
            R.I(f"v_pk_add_f32 {vr(XB+k,2)}, {vr(XB+k,2)}, {vr(XB+k+st,2)}")
    R.I(f"v_add_f32 v{T}, v{XB}, v{XB+1}")
    R.I(f"v_cvt_pk_bf16_f32 v{T}, v{T}, v{T}")
    R.I(f"v_lshlrev_b32 v{T}, 16, v{T}")
    R.I(f"v_mul_f32 v{T}, {fhex(-L2E)}, v{T}")
    R.I(f"v_exp_f32 v{T}, v{T}")
    R.wait(vm=0, lg=0)
    R.I(f"v_mov_b32 v{T+2}, {fhex(1e-6)}")
    R.I(f"v_mov_b32 v{T+3}, {fhex(1e-6)}")
    R.I(f"v_add_f32 v{T}, 1.0, v{T}")
    R.I(f"v_rcp_f32 v{T}, v{T}")
    for k in range(10):
        for h in range(2):
            R.I(f"v_dot2_f32_bf16 v{T+2+h}, v{PQB+10*h+k}, v{GW+10*h+k}, v{T+2+h}")
    R.I(f"v_cvt_pk_bf16_f32 v{T}, v{T}, v{T}")
    R.I(f"v_lshlrev_b32 v{T}, 16, v{T}")
    R.I("s_nop 1")
    R.I(f"v_rcp_f32 v{T+2}, v{T+2}")
    R.I(f"v_rcp_f32 v{T+3}, v{T+3}")
    R.I(f"v_sub_f32 v{T+1}, 1.0, v{T}")
    R.I(f"v_cvt_pk_bf16_f32 v{T+1}, v{T+1}, v{T+1}")
    R.I(f"v_lshlrev_b32 v{T+1}, 16, v{T+1}")
    R.I(f"v_mul_f32 v{T+1}, {fhex(2.0/(2048*640))}, v{T+1}")
    R.I(f"v_mul_f32 v{T+4}, v{T}, v{T+2}")
    R.I(f"v_mul_f32 v{T+5}, v{T}, v{T+2}")
    R.I(f"v_mul_f32 v{T+6}, v{T}, v{T+3}")
    R.I(f"v_mul_f32 v{T+7}, v{T}, v{T+3}")
    for q in range(10):
        s = T + 4 + 2 * (q // 5)
        for p in range(2):
            r = PQB + 2 * q + p
            u = ZP + 4 * q + 2 * p
            R.I(f"v_lshlrev_b32 v{u}, 16, v{r}")
            R.I(f"v_and_b32 v{u+1}, 0xffff0000, v{r}")
            R.I(f"v_pk_mul_f32 {vr(u,2)}, {vr(u,2)}, {vr(s,2)}")
            R.I(f"v_cvt_pk_bf16_f32 v{r}, v{u}, v{u+1}")
        R.I(f"buffer_store_dwordx2 {vr(PQB+2*q,2)}, v{AD+q}, s[16:19], s35 offen")
    R.I("s_cmp_lg_u32 s32, 0")
    R.I("s_cbranch_scc1 k2_end")
    R.I("s_lshl_b32 s36, s33, 6")
    R.I(f"s_add_u32 s36, s36, {WS_SC}")
    R.I("v_lshlrev_b32 v8, 2, v3")
    R.I("s_mov_b64 exec, 0xffff")
    R.I(f"buffer_store_dword v{T+1}, v8, s[16:19], s36 offen")
    R.I("s_endpgm")
    A.extend(R)

    R = A.fork()
    R.L("k2_r4")
    KVB = 28672
    KP, BF, D, AF = 16, 16, 100, 180
    R.I("s_sub_u32 s33, s2, 289")
    R.I("v_lshlrev_b32 v4, 4, v1")
    R.I("s_mul_i32 s34, s33, 25600")
    R.I("s_lshl_b32 s35, s32, 10")
    R.I("s_add_u32 s34, s34, s35")
    R.I("v_min_u32 v5, 99, v0")
    R.I("v_mul_u32_u24 v6, 205, v5")
    R.I("v_lshrrev_b32 v6, 10, v6")
    R.I("v_mul_u32_u24 v7, 5, v6")
    R.I("v_sub_u32 v7, v5, v7")
    R.I("v_mul_u32_u24 v8, 320, v6")
    R.I("v_lshl_add_u32 v8, v7, 4, v8")
    R.I("s_lshr_b32 s36, s33, 2")
    R.I("s_mul_i32 s36, s36, 25600")
    R.I("s_and_b32 s37, s33, 3")
    R.I("s_mul_i32 s37, s37, 6480")
    R.I("s_add_u32 s36, s36, s37")
    R.I(f"s_add_u32 s36, s36, {WS_KV}")
    R.I("v_lshlrev_b32 v9, 6, v6")
    R.I("v_lshl_add_u32 v9, v7, 3, v9")
    R.I("v_lshlrev_b32 v10, 3, v0")
    R.I("v_mov_b32 v12, 0")
    R.I("v_mov_b32 v13, 0")
    R.I(f"ds_write_b64 v10, v[12:13] offset:{KVB}")
    R.I("s_waitcnt lgkmcnt(0)")
    R.lg = []
    srd(R, 20, "s10", "s11", 819200)
    for mt in range(16):
        R.I(f"buffer_load_dwordx4 {vr(KP+4*mt,4)}, v8, s[16:19], s36 offen", "K")
        if mt < 15:
            R.I("s_add_u32 s36, s36, 204800")
    for k in range(7):
        R.I(f"s_add_u32 m0, s35, {4096*k}")
        R.I("buffer_load_dwordx4 v4, s[20:23], s34 offen lds", "WO")
        if k < 6:
            R.I("s_add_u32 s34, s34, 4096")
    R.I("s_barrier")
    R.I("v_lshlrev_b32 v10, 6, v3")
    R.I("v_lshl_add_u32 v10, v2, 4, v10")
    R.I("v_bfe_u32 v11, v1, 2, 2")
    R.I("v_and_b32 v12, 3, v1")
    R.I("v_lshlrev_b32 v12, 3, v12")
    R.I("s_mul_i32 s37, s32, 320")
    R.I("v_add_u32 v12, s37, v12")
    R.I("v_lshlrev_b32 v13, 3, v2")
    R.I("v_cmp_gt_u32 vcc, 3, v2")
    R.I("v_cndmask_b32 v14, 0, v13, vcc")
    R.I("v_add_u32 v14, v14, v11")
    R.I("v_mul_u32_u24 v14, 1280, v14")
    R.I("v_add_u32 v14, v14, v12")
    R.I("v_add_u32 v13, 4, v13")
    R.I("v_cmp_gt_u32 vcc, 2, v2")
    R.I("v_cndmask_b32 v15, 0, v13, vcc")
    R.I("v_add_u32 v15, v15, v11")
    R.I("v_mul_u32_u24 v15, 1280, v15")
    R.I("v_add_u32 v15, v15, v12")
    R.I("s_mul_i32 s37, s33, 5")
    for mu in range(2):
        R.I(f"v_add_u32 v5, {4*mu}, v2")
        R.I("v_add_u32 v5, s37, v5")
        R.I("v_lshrrev_b32 v11, 3, v5")
        R.I("v_mul_u32_u24 v11, 5120, v11")
        R.I(f"v_lshl_add_u32 v{6+mu}, v3, 4, v11")
        R.I("v_and_b32 v11, 3, v5")
        R.I(f"v_lshl_add_u32 v{6+mu}, v11, 8, v{6+mu}")
        R.I("v_and_b32 v11, 4, v5")
        R.I(f"v_lshl_add_u32 v{6+mu}, v11, 1, v{6+mu}")
    R.I("s_mul_i32 s40, s32, 204800")
    R.I(f"s_add_u32 s40, s40, {WS_M}")
    R.I("s_add_u32 s41, s40, 4096")
    R.I("s_add_u32 s42, s40, 102400")
    R.I("s_add_u32 s43, s42, 4096")
    R.wait(vm=lambda x: x == "K")
    for st in (8, 4, 2, 1):
        for k in range(st):
            for h in range(2):
                a = KP + 4 * k + 2 * h
                R.I(f"v_pk_add_f32 {vr(a,2)}, {vr(a,2)}, {vr(a+4*st,2)}")
    R.I(f"v_cvt_pk_bf16_f32 v{KP}, v{KP}, v{KP+1}")
    R.I(f"v_cvt_pk_bf16_f32 v{KP+1}, v{KP+2}, v{KP+3}")
    R.I(f"ds_write_b64 v9, {vr(KP,2)} offset:{KVB}")
    R.wait(vm=0, lg=0)
    R.I("s_barrier")
    for mu in range(2):
        R.I(f"ds_read_b128 {vr(AF+4*mu,4)}, v10 offset:{KVB+1024*mu}", -1)
    for t in range(10):
        for u in range(2):
            R.I(f"ds_read_b64_tr_b16 {vr(BF+4*t+2*u,2)}, v{14+u} offset:{32*t}", t)
    for t in range(10):
        R.wait(lg=lambda x: x <= t)
        for mu in range(2):
            R.I(mfma(vr(D + (2 * t + mu) * 4, 4), vr(AF + 4 * mu, 4), vr(BF + 4 * t, 4), "0"))
    for t in range(10):
        for mu in range(2):
            d = D + (2 * t + mu) * 4
            R.I(f"v_cvt_pk_bf16_f32 v{d}, v{d}, v{d+1}")
            R.I(f"v_cvt_pk_bf16_f32 v{d+1}, v{d+2}, v{d+3}")
    for mu in range(2):
        if mu == 1:
            R.I("s_mov_b64 exec, 0xffff")
        for t in range(10):
            ct = t % 5
            s = 40 + 2 * (t // 5) + (1 if ct == 4 else 0)
            R.I(f"buffer_store_dwordx2 {vr(D+(2*t+mu)*4,2)}, v{6+mu}, s[16:19], s{s} offen offset:{(ct%4)*1024 if ct < 4 else 0}")
    R.L("k2_end")
    R.I("s_endpgm")
    A.extend(R)
    return A.lines, dict(vgpr=256, accum=256, sgpr=72, lds=30720, grid=321, block=256)


TRANS_OPS = ("v_cos_f32", "v_sin_f32", "v_exp_f32", "v_rcp_f32")
def cost(s):
    op = s.split()[0]
    if op.startswith(TRANS_OPS): return 8
    if op.startswith("buffer_"): return 8
    return 4

def k3(AHEAD=26, PRE=22, BUDGET=8):
    A = Asm()
    A.L("k3_kernel")
    A.I("s_cmp_ge_u32 s2, 256")
    A.I("s_cbranch_scc1 k3_end")
    A.I("s_load_dwordx2 s[16:17], s[0:1], 72")
    A.I("s_load_dwordx2 s[20:21], s[0:1], 56")
    A.I("v_lshrrev_b32 v8, 6, v0")
    A.I("v_and_b32 v1, 63, v0")
    A.I("v_readfirstlane_b32 s32, v8")
    A.I("v_lshlrev_b32 v4, 4, v1")
    A.I("s_and_b32 s36, s2, 7")
    A.I("s_lshr_b32 s37, s2, 3")
    A.I("s_lshr_b32 s33, s36, 1")
    A.I("s_lshl_b32 s33, s33, 3")
    A.I("s_and_b32 s38, s37, 7")
    A.I("s_add_u32 s33, s33, s38")
    A.I("s_and_b32 s34, s36, 1")
    A.I("s_lshl_b32 s34, s34, 2")
    A.I("s_lshr_b32 s38, s37, 3")
    A.I("s_add_u32 s34, s34, s38")
    A.I("s_xor_b32 s35, s32, 3")
    A.I(f"s_mov_b32 s18, {WS_END}")
    A.I("s_mov_b32 s19, 0x00020000")
    A.I("v_and_b32 v3, 15, v1")
    A.I("v_lshrrev_b32 v2, 4, v1")
    A.I("v_lshlrev_b32 v7, 2, v3")
    A.I("v_add_u32 v5, 4096, v4")
    A.I("v_add_u32 v6, 8192, v4")
    A.I("s_lshl_b32 s36, s33, 2")
    A.I("s_mul_i32 s37, s32, 5120")
    for q in range(4):
        A.I(f"s_xor_b32 s38, s35, {q}")
        A.I("s_add_u32 s38, s38, s36")
        A.I(f"s_lshl_b32 s{52+q}, s38, 6")
        A.I(f"s_add_u32 s{52+q}, s{52+q}, {WS_SC}")
        A.I("s_mul_i32 s38, s38, 20480")
        A.I(f"s_add_u32 s{40+q}, s38, s37")
        if WS_PQ:
            A.I(f"s_add_u32 s{40+q}, s{40+q}, {WS_PQ}")
    A.I("s_mul_i32 s38, s34, 102400")
    A.I("s_mul_i32 s39, s32, 25600")
    A.I("s_add_u32 s38, s38, s39")
    for t in range(5):
        A.I(f"s_add_u32 s{44+t}, s38, {WS_M + 5120*t}")
    A.I("s_lshr_b32 s39, s35, 1")
    A.I("s_lshl_b32 s37, s37, 1")
    for u in range(2):
        A.I(f"s_xor_b32 s38, s39, {u}")
        A.I("s_lshl_b32 s56, s33, 1")
        A.I(f"s_add_u32 s{58+u}, s38, s56")
        A.I(f"s_mul_i32 s38, s{58+u}, 40960")
        A.I("s_add_u32 s38, s38, s37")
        A.I(f"s_add_u32 s{50+u}, s38, {WS_U}")

    SCV, SCO, ACCO, TB, GB, TH0, TH1, E16, K2C, GT, YD, YF = 16, 20, 24, 44, 92, 132, 137, 142, 147, 152, 168, 200
    T = lambda q, part: vr(TB + q * 12 + part * 4, 4)
    G = lambda t, ct: GB + (t & 1) * 20 + ct * 4
    acc = lambda q, ct: vr(ACCO + 4 * ct, 4) if q == 3 else ar(q * 20 + ct * 4, 4)
    NS = 59
    def slot(k):
        k %= NS
        return ar(60 + 4 * k, 4) if k < 49 else vr(216 + 4 * (k - 49), 4)
    seq = [("a", 0), ("b", 0), ("a", 1), ("b", 1), ("a", 2), ("b", 2), ("a", 3), ("b", 3), ("b", 4), ("a", 4)]
    loads = []
    for kind, t in seq:
        if kind == "a":
            P = [(("P", t, q), f"v{4 if t < 4 else 5}, s[16:19], s{40+q} offen offset:{1024*t if t < 4 else 0}") for q in range(4)]
            M = [(("M", t, ct), f"v{4 if ct < 4 else 5}, s[16:19], s{44+t} offen offset:{1024*ct if ct < 4 else 0}") for ct in range(5)]
            loads += (M + P) if t == 4 else (P[:1] + M[:1] + P[1:] + M[1:])
        else:
            for u in range(2):
                for ri in range(2):
                    off = 2048 * t + 1024 * ri
                    loads.append((("U", t, u, ri), f"v{4 + off // 4096}, s[16:19], s{50+u} offen offset:{off % 4096}"))
    idx = {k: n for n, (k, _) in enumerate(loads)}
    reg = lambda *k: slot(idx[k])
    st = dict(nl=0, freed=set(), used=0)
    def can_load():
        n = st["nl"]
        if n >= len(loads): return False
        if n >= NS and (n - NS) not in st["freed"]: return False
        return n < st["used"] + AHEAD
    def issue_load():
        n = st["nl"]
        A.I(f"buffer_load_dwordx4 {slot(n)}, {loads[n][1]}", n)
        st["nl"] += 1
    def need(*k):
        n = idx[k]
        while st["nl"] <= n:
            issue_load()
        A.wait(vm=lambda x: isinstance(x, int) and x <= n)
        st["used"] = max(st["used"], n + 1)

    A.I("s_waitcnt lgkmcnt(0)")
    for q in range(4):
        A.I(f"buffer_load_dword v{SCV+q}, v7, s[16:19], s{52+q} offen", "SC")

    def ggen(t):
        o = []
        for ct in range(5):
            tm = GT + 8 * (ct & 1)
            c0, c1, c2, c3, n0, n1, n2, n3 = range(tm, tm + 8)
            if t > 0:
                o.append(f"v_add_f32 v{TH0+ct}, v{TH0+ct}, v{E16+ct}")
                o.append(f"v_add_f32 v{TH1+ct}, v{TH1+ct}, v{E16+ct}")
            o.append(f"v_cos_f32 v{c0}, v{TH0+ct}")
            o.append(f"v_cos_f32 v{c1}, v{TH1+ct}")
            o.append(f"v_sin_f32_e64 v{n0}, -v{TH0+ct}")
            o.append(f"v_sin_f32_e64 v{n1}, -v{TH1+ct}")
            o.append(f"v_fma_f32 v{c2}, v{K2C+ct}, v{c1}, -v{c0}")
            o.append(f"v_fma_f32 v{n2}, v{K2C+ct}, v{n1}, -v{n0}")
            o.append(f"v_fma_f32 v{c3}, v{K2C+ct}, v{c2}, -v{c1}")
            o.append(f"v_fma_f32 v{n3}, v{K2C+ct}, v{n2}, -v{n1}")
            if t == 0:
                o.append(f"v_cndmask_b32 v{c0}, v{c0}, 0.5, s[60:61]")
                o.append(f"v_cndmask_b32 v{n0}, v{n0}, v9, s[60:61]")
            o.append(f"v_cvt_pk_bf16_f32 v{G(t,ct)}, v{c0}, v{c1}")
            o.append(f"v_cvt_pk_bf16_f32 v{G(t,ct)+2}, v{n0}, v{n1}")
            o.append(f"v_cvt_pk_bf16_f32 v{G(t,ct)+1}, v{c2}, v{c3}")
            o.append(f"v_cvt_pk_bf16_f32 v{G(t,ct)+3}, v{n2}, v{n3}")
        return o
    pro = []
    pro.append("s_mul_i32 s38, s34, 80")
    pro.append("v_add_u32 v10, s38, v3")
    pro.append("s_mul_i32 s38, s32, 80")
    pro.append("v_lshl_add_u32 v11, v2, 2, s38")
    pro.append("s_cmp_eq_u32 s32, 0")
    pro.append("s_cselect_b32 s60, 0xffff, 0")
    pro.append("s_mov_b32 s61, 0")
    pro.append(f"s_mov_b32 s62, {fhex(-640.0)}")
    pro.append("v_and_b32 v9, 1, v3")
    pro.append("v_lshlrev_b32 v9, 31, v9")
    pro.append("v_or_b32 v9, 0.5, v9")
    for ct in range(5):
        a, b, c = GT, GT + 1, GT + 2
        pro.append(f"v_add_u32 v{a}, {16*ct}, v10")
        pro.append(f"v_mul_u32_u24 v{b}, v{a}, v11")
        pro.append(f"v_cvt_f32_u32 v{a}, v{a}")
        pro.append(f"v_cvt_f32_u32 v{b}, v{b}")
        pro.append(f"v_mul_f32 v{c}, {fhex(1/640)}, v{b}")
        pro.append(f"v_rndne_f32 v{c}, v{c}")
        pro.append(f"v_fma_f32 v{b}, v{c}, s62, v{b}")
        pro.append(f"v_mul_f32 v{TH0+ct}, {fhex(1/640)}, v{b}")
        pro.append(f"v_mul_f32 v{c}, {fhex(1/640)}, v{a}")
        pro.append(f"v_add_f32 v{TH1+ct}, v{TH0+ct}, v{c}")
        pro.append(f"v_cos_f32 v{K2C+ct}, v{c}")
        pro.append(f"v_mul_f32 v{E16+ct}, {fhex(1/40)}, v{a}")
        pro.append(f"v_fract_f32 v{E16+ct}, v{E16+ct}")
        pro.append(f"v_add_f32 v{K2C+ct}, v{K2C+ct}, v{K2C+ct}")
    TT = YD
    deltas = [16 * (j >> 2) + (j & 3) for j in range(8)]
    for u in range(2):
        ph, c_, s_ = TT + 24 * u, TT + 24 * u + 8, TT + 24 * u + 16
        pro.append(f"v_lshl_add_u32 v12, v3, 6, s{58+u}")
        pro.append("v_cvt_f32_u32 v12, v12")
        pro.append(f"v_mul_f32 v12, {fhex(1/2048)}, v12")
        pro.append("v_cvt_f32_u32 v13, v2")
        pro.append("v_mul_f32 v13, 4.0, v13")
        pro.append(f"v_mul_f32 v{ph}, v13, v12")
        for j in range(1, 8):
            pro.append(f"v_fmamk_f32 v{ph+j}, v12, {fhex(deltas[j])}, v{ph}")
        for j in range(8):
            pro.append(f"v_cos_f32 v{c_+j}, v{ph+j}")
            pro.append(f"v_sin_f32 v{s_+j}, v{ph+j}")
    pro += ggen(0)
    per = max(1, len(pro) // max(1, PRE))
    for n, x in enumerate(pro):
        if n % per == 0 and st["nl"] < PRE:
            issue_load()
        A.I(x)
    while st["nl"] < PRE:
        issue_load()
    tsc = []
    for q in range(4):
        tsc.append(f"s_xor_b32 s38, s35, {q}")
        tsc.append("s_lshl_b32 s38, s38, 31")
        tsc.append(f"v_xor_b32 v{SCO+q}, s38, v{SCV+q}")
    for q in range(4):
        u = q >> 1
        c_, s_ = TT + 24 * u + 8, TT + 24 * u + 16
        tm = GT
        for j in range(8):
            sc = (SCO if j & 1 else SCV) + q
            tsc.append(f"v_mul_f32 v{tm+j}, v{sc}, v{c_+j}")
            tsc.append(f"v_mul_f32 v{tm+8+j}, v{sc}, v{s_+j}")
        for p in range(4):
            tsc.append(f"v_cvt_pk_bf16_f32 v{TB+12*q+p}, v{tm+2*p}, v{tm+2*p+1}")
            tsc.append(f"v_cvt_pk_bf16_f32 v{TB+12*q+4+p}, v{tm+8+2*p}, v{tm+8+2*p+1}")
            tsc.append(f"v_cvt_pk_bf16_f32 v{TB+12*q+8+p}, -v{tm+8+2*p}, -v{tm+8+2*p+1}")
    A.wait(vm=lambda x: x == "SC")
    for n, x in enumerate(tsc):
        if n % 16 == 0 and can_load():
            issue_load()
        A.I(x)
    A.I("s_mul_i32 s38, s32, 15360")
    A.I("v_add_u32 v14, s38, v4")
    for q in range(3):
        A.I(f"s_xor_b32 s38, s35, {q}")
        A.I("s_mul_i32 s38, s38, 15360")
        A.I(f"s_add_u32 s38, s38, {5120*q}")
        A.I(f"v_add_u32 v{10+q}, s38, v4")
    A.I("s_and_b32 s38, s32, 1")
    A.I("s_lshl_b32 s38, s38, 10")
    A.I("s_lshr_b32 s39, s32, 1")
    A.I("s_add_u32 s38, s38, s39")
    A.I("s_lshl_b32 s39, s33, 1")
    A.I("s_add_u32 s38, s38, s39")
    A.I("s_mul_i32 s38, s38, 1280")
    A.I("s_mul_i32 s39, s34, 160")
    A.I("s_add_u32 s63, s38, s39")
    A.I("v_mul_u32_u24 v15, 81920, v3")
    A.I("v_lshl_add_u32 v15, v2, 3, v15")
    A.I("s_mov_b32 s22, 2621440")
    A.I("s_mov_b32 s23, 0x00020000")

    fill = []
    def gap(hi=None, budget=BUDGET):
        c = 0
        while hi and c < budget:
            x = hi.pop(0); A.I(x); c += cost(x)
        if c < budget and can_load():
            issue_load(); c += 8
        while fill and c < budget:
            if cost(fill[0][1]) + c > budget and c > 0: break
            x = fill.pop(0)[1]; A.I(x); c += cost(x)
    def flush(tag):
        while any(f[0] == tag for f in fill):
            A.I(fill.pop(0)[1])
    fill += [(1, x) for x in ggen(1)]
    first = True
    for kind, t in seq:
        if kind == "a" and t < 4:
            for ct in range(5):
                for q in range(4):
                    need("M", t, ct); need("P", t, q)
                    A.I(mfma(acc(q, ct), reg("M", t, ct), reg("P", t, q), "0" if first else acc(q, ct)))
                    gap()
                st["freed"].add(idx[("M", t, ct)])
            for q in range(4):
                st["freed"].add(idx[("P", t, q)])
            first = False
        elif kind == "a":
            hi = []
            for q in range(4):
                for ct in range(5):
                    need("M", t, ct); need("P", t, q)
                    A.I(mfma(acc(q, ct), reg("M", t, ct), reg("P", t, q), acc(q, ct)))
                    if ct >= 2 or q == 3:
                        gap(hi)
                if q < 3:
                    hi += [f"ds_write_b128 v{10+q}, {acc(q, ct)} offset:{1024*ct}" for ct in range(5)]
            for x in hi:
                A.I(x)
        else:
            def cvt(q):
                yr, yi = YD + 8 * q, YD + 8 * q + 4
                return [f"v_cvt_pk_bf16_f32 v{YF+4*q}, v{yr}, v{yr+1}", f"v_cvt_pk_bf16_f32 v{YF+4*q+1}, v{yr+2}, v{yr+3}",
                        f"v_cvt_pk_bf16_f32 v{YF+4*q+2}, v{yi}, v{yi+1}", f"v_cvt_pk_bf16_f32 v{YF+4*q+3}, v{yi+2}, v{yi+3}"]
            hi = []
            for q in range(4):
                u = q >> 1
                need("U", t, u, 0); need("U", t, u, 1)
                ur, ui = reg("U", t, u, 0), reg("U", t, u, 1)
                yr, yi = vr(YD + 8 * q, 4), vr(YD + 8 * q + 4, 4)
                ms = [mfma(yr, ur, T(q, 0), "0"), mfma(yi, ui, T(q, 0), "0"), mfma(yr, ui, T(q, 2), yr), mfma(yi, ur, T(q, 1), yi)]
                if q >= 2:
                    hi += cvt(q - 2)
                for m in ms:
                    A.I(m)
                    gap(hi)
            for u in range(2):
                for ri in range(2):
                    st["freed"].add(idx[("U", t, u, ri)])
            flush(t)
            for q in range(4):
                if q < 2:
                    hi += cvt(q + 2)
                for ct in range(5):
                    A.I(mfma(acc(q, ct), vr(G(t, ct), 4), vr(YF + 4 * q, 4), acc(q, ct)))
                    gap(hi)
                assert not hi
            if t + 2 <= 4:
                fill += [(t + 2, x) for x in ggen(t + 2)]
    assert not fill and st["nl"] == len(loads)
    A.wait(lg=0)
    A.I("s_barrier")
    RB = TB
    for ct in range(5):
        for q in range(3):
            A.I(f"ds_read_b128 {vr(RB+(ct*3+q)*4,4)}, v14 offset:{5120*q+1024*ct}", ct)
    for ct in range(5):
        A.wait(lg=lambda x: x is not None and x <= ct)
        r = RB + ct * 12
        for h in (0, 2):
            A.I(f"v_pk_add_f32 {vr(r+h,2)}, {vr(r+h,2)}, {vr(r+4+h,2)}")
            A.I(f"v_pk_add_f32 {vr(ACCO+4*ct+h,2)}, {vr(ACCO+4*ct+h,2)}, {vr(r+8+h,2)}")
        for h in (0, 2):
            A.I(f"v_pk_add_f32 {vr(r+h,2)}, {vr(r+h,2)}, {vr(ACCO+4*ct+h,2)}")
        A.I(f"v_cvt_pk_bf16_f32 v{r}, v{r}, v{r+1}")
        A.I(f"v_cvt_pk_bf16_f32 v{r+1}, v{r+2}, v{r+3}")
        A.I(f"buffer_store_dwordx2 {vr(r,2)}, v15, s[20:23], s63 offen offset:{32*ct}")
    A.L("k3_end")
    A.I("s_endpgm")
    return A.lines, dict(vgpr=512, accum=256, sgpr=72, lds=61440, grid=256, block=256)
```

```python
import sys, math
import numpy as np
from asmlib import *

NAME = "gated_mix__linear_attn_block__spectral_gfnet__prompt"
WS_PQ = 0x000000
WS_V  = 0x280000
WS_U  = 0x500000
WS_M  = 0x780000
WS_KV = 0x850000
WS_Z  = 0xB70000
WS_VS = 0xB80000
WS_SC = 0xB88000
WS_END = 0xB90000
L2E = 1.4426950408889634

def rbf_bits(x):
    x = np.ascontiguousarray(x, dtype=np.float32); u = x.view(np.uint32)
    return ((u + 0x7FFF + ((u >> 16) & 1)) >> 16).astype(np.uint16)

def srd(A, d, lo, hi, size):
    A.I(f"s_mov_b32 s{d}, {lo}")
    A.I(f"s_mov_b32 s{d+1}, {hi}")
    A.I(f"s_mov_b32 s{d+2}, {size}")
    A.I(f"s_mov_b32 s{d+3}, 0x00020000")

def getpc_tab(A, d, label):
    A.I(f"s_getpc_b64 s[{d}:{d+1}]")
    A.I(f"s_add_u32 s{d}, s{d}, {label}@rel32@lo+4")
    A.I(f"s_addc_u32 s{d+1}, s{d+1}, {label}@rel32@hi+12")

def interleave(A, mf, fill, per=1):
    pass

def gen_T(A, kf, ph0, tmp, dC, dS, dN, deltas, scale=None):
    ph, c, s = tmp, tmp + 8, tmp + 16
    for j in range(8):
        if deltas[j] == 0:
            A.I(f"v_mov_b32 v{ph+j}, v{ph0}")
        else:
            A.I(f"v_fmamk_f32 v{ph+j}, v{kf}, {fhex(deltas[j])}, v{ph0}")
    for j in range(8):
        A.I(f"v_cos_f32 v{c+j}, v{ph+j}")
        A.I(f"v_sin_f32 v{s+j}, v{ph+j}")
    if scale is not None:
        for j in range(8):
            A.I(f"v_mul_f32 v{c+j}, v{scale}, v{c+j}")
            A.I(f"v_mul_f32 v{s+j}, v{scale}, v{s+j}")
    for p in range(4):
        A.I(f"v_cvt_pk_bf16_f32 v{dC+p}, v{c+2*p}, v{c+2*p+1}")
        A.I(f"v_cvt_pk_bf16_f32 v{dS+p}, v{s+2*p}, v{s+2*p+1}")
        A.I(f"v_cvt_pk_bf16_f32 v{dN+p}, -v{s+2*p}, -v{s+2*p+1}")

NSLOT = 7
SLAB = 20480
def k1():
    A = Asm()
    ACC, BB, TF, TMP = 16, 96, 176, 200
    acc = lambda rt, ct: ACC + (ct * 2 + rt) * 4
    bb = lambda b, ct: BB + b * 40 + ct * 4
    af = lambda ks, rt: (ks * 2 + rt) * 4
    VB = 4
    VA = 9
    VT = 11
    VTR = 250
    A.L("k1_kernel")
    A.I("s_cmp_ge_u32 s2, 256")
    A.I("s_cbranch_scc1 k1_end")
    A.I("s_load_dwordx4 s[4:7], s[0:1], 0")
    A.I("s_load_dwordx2 s[16:17], s[0:1], 72")
    getpc_tab(A, 30, "FTAB")
    A.I("v_and_b32 v1, 63, v0")
    A.I("v_lshrrev_b32 v12, 6, v0")
    A.I("v_lshrrev_b32 v2, 4, v1")
    A.I("v_readfirstlane_b32 s22, v12")
    A.I("v_and_b32 v3, 15, v1")
    A.I("s_and_b32 s32, s2, 7")
    A.I("s_lshr_b32 s33, s2, 3")
    A.I("s_and_b32 s20, s32, 1")
    A.I("s_lshl_b32 s20, s20, 3")
    A.I("s_and_b32 s34, s33, 7")
    A.I("s_add_u32 s20, s20, s34")
    A.I("s_lshr_b32 s21, s32, 1")
    A.I("s_lshr_b32 s35, s33, 3")
    A.I("s_lshl_b32 s36, s35, 2")
    A.I("s_add_u32 s36, s36, s21")
    A.I("s_sub_u32 s36, s36, 4")
    A.I("s_mul_i32 s37, s36, 160")
    A.I("s_add_u32 s37, s37, 1280")
    A.I("s_mul_i32 s24, s21, 320")
    A.I("s_mov_b32 s25, 0")
    A.I("s_sub_u32 s38, s35, 1")
    A.I("s_cmp_lt_u32 s38, 2")
    A.I("s_cselect_b32 s24, s37, s24")
    A.I("s_cselect_b32 s25, 1120, s25")
    A.I("s_cmp_eq_u32 s35, 3")
    A.I("s_mov_b32 s23, 3840")
    A.I("s_mov_b32 s14, 2457600")
    A.I("s_cselect_b32 s23, 1280, s23")
    A.I("s_cselect_b32 s14, 819200, s14")
    A.I("s_lshl_b32 s27, s23, 6")
    A.I("s_lshl_b32 s28, s22, 10")
    A.I("s_lshl_b32 s29, s20, 2")
    A.I("s_add_u32 s29, s29, s22")
    A.I("v_lshlrev_b32 v12, 6, v3")
    A.I("v_add_u32 v12, s29, v12")
    A.I("v_mul_u32_u24 v12, 1280, v12")
    A.I("v_lshl_add_u32 v9, v2, 4, v12")
    A.I("v_add_u32 v10, 1310720, v9")
    A.I("v_lshrrev_b32 v12, 2, v1")
    A.I("v_lshrrev_b32 v13, 4, v1")
    A.I("v_and_b32 v13, 2, v13")
    A.I("v_and_b32 v14, 3, v1")
    A.I("v_xor_b32 v14, v13, v14")
    A.I("s_lshl_b32 s38, s22, 4")
    A.I("v_add_u32 v12, s38, v12")
    A.I("v_mul_lo_u32 v12, v12, s23")
    A.I("v_lshl_add_u32 v12, v14, 4, v12")
    A.I("v_add_u32 v4, s24, v12")
    A.I("v_add_u32 v5, 64, v4")
    A.I("v_lshrrev_b32 v13, 1, v14")
    A.I("v_mul_lo_u32 v13, v13, s25")
    A.I("v_add3_u32 v6, v4, v13, 64")
    A.I("v_add_u32 v6, 64, v6")
    A.I("v_add_u32 v7, s25, v4")
    A.I("v_add_u32 v7, 192, v7")
    A.I("v_add_u32 v8, 64, v7")
    A.I("s_waitcnt lgkmcnt(0)")
    srd(A, 8, "s4", "s5", 2621440)
    A.I("s_cmp_eq_u32 s35, 3")
    A.I("s_cselect_b32 s12, s30, s6")
    A.I("s_cselect_b32 s13, s31, s7")
    A.I("s_mov_b32 s15, 0x00020000")
    A.I(f"s_mov_b32 s18, {WS_END}")
    A.I("s_mov_b32 s19, 0x00020000")
    A.I("s_mov_b32 s26, 0")

    def dma_slab(A, s):
        slot = s % NSLOT
        out = []
        for ctp in range(5):
            out.append((f"s_add_u32 m0, s28, {slot*SLAB + ctp*4096}", None))
            out.append((f"buffer_load_dwordx4 v{VB+ctp}, s[12:15], s26 offen lds", ("B", s)))
        out.append(("s_add_u32 s26, s26, s27", None))
        return out
    def a_loads(s):
        out = []
        for ks in (2 * s, 2 * s + 1):
            for rt in range(2):
                out.append((f"buffer_load_dwordx4 {ar(af(ks,rt),4)}, v{VA+rt}, s[8:11], 0 offen offset:{64*ks}", ("A", s)))
        return out
    for s in range(NSLOT):
        for t, tag in dma_slab(A, s) + a_loads(s):
            A.I(t, tag)
    A.I("v_lshrrev_b32 v12, 2, v1")
    A.I("v_and_b32 v12, 3, v12")
    A.I("v_lshl_add_u32 v12, v2, 3, v12")
    A.I("v_lshlrev_b32 v12, 6, v12")
    A.I("v_and_b32 v13, 3, v1")
    A.I("v_lshl_add_u32 v12, v13, 3, v12")
    A.I("v_and_b32 v13, 1, v2")
    A.I("v_lshlrev_b32 v13, 5, v13")
    A.I(f"v_add_u32 v{VTR}, v12, v13")
    A.I("v_xor_b32 v13, 32, v13")
    A.I(f"v_add_u32 v{VTR+1}, v12, v13")
    for grp in (1, 2):
        A.I(f"v_add_u32 v{VTR+2*grp}, {grp*3*SLAB}, v{VTR}")
        A.I(f"v_add_u32 v{VTR+2*grp+1}, {grp*3*SLAB}, v{VTR+1}")
    A.I(f"s_mov_b32 s40, {fhex(L2E)}")
    A.I(f"s_mov_b32 s41, {fhex(L2E)}")
    A.I(f"s_mov_b32 s42, {fhex(1e-6)}")
    A.I(f"s_mov_b32 s43, {fhex(1e-6)}")
    A.I("v_lshlrev_b32 v11, 4, v1")
    A.I("s_cmp_eq_u32 s35, 0")
    A.I("s_cbranch_scc1 k1_q")
    A.I("s_cmp_eq_u32 s35, 3")
    A.I("s_cbranch_scc1 k1_f")

    def reads(t):
        s, ksl = t // 2, t % 2
        slot = s % NSLOT
        grp, so = slot // 3, (slot % 3) * SLAB
        out = []
        for ct in range(10):
            for u in range(2):
                off = so + (ct // 2) * 4096 + ksl * 2048 + u * 256
                out.append((f"ds_read_b64_tr_b16 {vr(bb(t&1,ct)+2*u,2)}, v{VTR+2*grp+(ct&1)} offset:{off}", ("R", t, ct)))
        return out

    def main(A, swapped, cinit):
        A.wait(vm=lambda x: x is not None and x[1] == 0)
        A.I("s_barrier")
        for t_, tag in reads(0):
            A.I(t_, tag)
        pend = []
        for t in range(20):
            fill = reads(t + 1) if t < 19 else []
            boundary = (t % 2 == 1 and t < 19)
            s = (t + 1) // 2
            m = 0
            for ct in range(10):
                for rt in range(2):
                    if rt == 0 and ct in (0, 5) and not (boundary and ct == 5):
                        hi = ct + 4
                        A.wait(lg=lambda x: x is not None and x[1] == t and x[2] <= hi)
                    if boundary and m == 4:
                        A.wait(vm=lambda x: x is not None and x[1] <= s, lg=0)
                        A.I("s_barrier")
                        if s + NSLOT - 1 < 10:
                            pend += dma_slab(A, s + NSLOT - 1) + a_loads(s + NSLOT - 1)
                    c = vr(acc(rt, ct), 4) if t > 0 else cinit(ct)
                    a_, b_ = ar(af(t, rt), 4), vr(bb(t & 1, ct), 4)
                    if swapped:
                        a_, b_ = b_, a_
                    A.I(mfma(vr(acc(rt, ct), 4), a_, b_, c))
                    m += 1
                    if boundary and m <= 4:
                        continue
                    nf = 2 if boundary else 1
                    for _ in range(nf):
                        if fill:
                            A.I(*fill.pop(0))
                    if not boundary and pend:
                        A.I(*pend.pop(0))
                        if pend and pend[0][1] is not None:
                            A.I(*pend.pop(0))
            assert not fill
        assert not pend

    def phi_pairs(A, regs, tmp):
        for i0 in range(0, len(regs), 4):
            grp = regs[i0:i0 + 4]
            for k, r in enumerate(grp):
                A.I(f"v_pk_fma_f32 {vr(tmp+2*k,2)}, {vr(r,2)}, s[40:41], s[40:41] neg_lo:[0,0,1] neg_hi:[0,0,1]")
            for k, r in enumerate(grp):
                A.I(f"v_exp_f32_e64 v{tmp+2*k}, v{tmp+2*k} clamp")
                A.I(f"v_exp_f32_e64 v{tmp+2*k+1}, v{tmp+2*k+1} clamp")
            for k, r in enumerate(grp):
                A.I(f"v_max_f32 v{r}, v{r}, v{tmp+2*k}")
                A.I(f"v_max_f32 v{r+1}, v{r+1}, v{tmp+2*k+1}")
            for k, r in enumerate(grp):
                A.I(f"v_pk_add_f32 {vr(r,2)}, {vr(r,2)}, s[42:43]")

    K = A.fork()
    K.C("---- kv tile")
    main(K, False, lambda ct: "1.0" if ct < 5 else "0")
    XB = 3 * SLAB
    K.I(f"v_add_u32 v12, {XB}, v11")
    K.I("s_mul_i32 s38, s22, 10240")
    K.I("v_add_u32 v13, s38, v12")
    FR = BB
    for ct in list(range(5, 10)) + list(range(5)):
        if ct < 5:
            phi_pairs(K, [acc(0, ct), acc(0, ct) + 2, acc(1, ct), acc(1, ct) + 2], TMP)
        for rt in range(2):
            for p in range(2):
                K.I(f"v_cvt_pk_bf16_f32 v{FR+ct*4+rt*2+p}, v{acc(rt,ct)+2*p}, v{acc(rt,ct)+2*p+1}")
        K.I(f"ds_write_b128 v13, {vr(FR+ct*4,4)} offset:{ct*1024}")
    K.I("v_mul_u32_u24 v14, 320, v3")
    K.I("v_lshl_add_u32 v14, v2, 4, v14")
    K.I("v_lshlrev_b32 v15, 2, v3")
    K.I("s_lshl_b32 s38, s20, 3")
    K.I("s_add_u32 s38, s38, s36")
    K.I("s_mul_i32 s38, s38, 25600")
    K.I(f"s_add_u32 s38, s38, {WS_KV}")
    K.I("s_mul_i32 s39, s20, 2560")
    K.I("s_mul_i32 s44, s36, 320")
    K.I("s_add_u32 s39, s39, s44")
    K.I(f"s_add_u32 s39, s39, {WS_Z}")
    for r in range(4):
        K.I(f"v_mov_b32 v{TF+r}, 0x3f803f80")
    K.wait(lg=0)
    K.I("s_barrier")
    plans = [[(0, 0), (1, 0), ("z", 0), (3, 4), (4, 4)],
             [(0, 1), (1, 1), (2, 1), ("z", 1)],
             [(1, 2), (2, 2), (3, 2), ("z", 2)],
             [(2, 3), (3, 3), (4, 3), ("z", 3), ("z", 4)]]
    for w in range(3):
        K.I(f"s_cmp_eq_u32 s22, {w}")
        K.I(f"s_cbranch_scc1 k1_kvw{w}")
    for w in (3, 0, 1, 2):
        W = K.fork()
        if w != 3:
            W.L(f"k1_kvw{w}")
        plan = plans[w]
        need = []
        for a, b in plan:
            if a != "z" and (5 + a) not in need:
                need.append(5 + a)
            if b not in need:
                need.append(b)
        fr = lambda ws, ct: 16 + (ws * 6 + need.index(ct)) * 4
        D = 112
        for ws in range(4):
            for ct in need:
                W.I(f"ds_read_b128 {vr(fr(ws,ct),4)}, v12 offset:{ws*10240+ct*1024}", ("X", ws))
        for ws in range(4):
            W.wait(lg=lambda x: x is not None and x[0] == "X" and x[1] <= ws)
            for k, (a, b) in enumerate(plan):
                a_ = vr(TF, 4) if a == "z" else vr(fr(ws, 5 + a), 4)
                W.I(mfma(vr(D + 4 * k, 4), a_, vr(fr(ws, b), 4), "0" if ws == 0 else vr(D + 4 * k, 4)))
        for k, (a, b) in enumerate(plan):
            if a == "z":
                W.I(f"buffer_store_dword v{D+4*k}, v15, s[16:19], s39 offen offset:{b*64}")
            else:
                W.I(f"s_add_u32 s44, s38, {b*5120}")
                W.I(f"buffer_store_dwordx4 {vr(D+4*k,4)}, v14, s[16:19], s44 offen offset:{a*64}")
        W.I("s_endpgm")
        K.extend(W)
    A.extend(K)

    Q = A.fork()
    Q.vm, Q.lg = list(A.vm), list(A.lg)
    Q.L("k1_q")
    main(Q, True, lambda ct: "1.0")
    Q.I("s_mul_i32 s38, s29, 40960")
    Q.I("s_mul_i32 s39, s21, 5120")
    Q.I("s_add_u32 s38, s38, s39")
    if WS_PQ:
        Q.I(f"s_add_u32 s38, s38, {WS_PQ}")
    Q.I("s_add_u32 s39, s38, 20480")
    Q.I("v_add_u32 v12, 4096, v11")
    for kp in range(5):
        for rt in range(2):
            phi_pairs(Q, [acc(rt, 2*kp), acc(rt, 2*kp) + 2, acc(rt, 2*kp+1), acc(rt, 2*kp+1) + 2], TMP)
            o = BB + (kp * 2 + rt) * 4
            for h in range(2):
                for p in range(2):
                    r = acc(rt, 2 * kp + h) + 2 * p
                    Q.I(f"v_cvt_pk_bf16_f32 v{o+2*h+p}, v{r}, v{r+1}")
            if kp < 4:
                Q.I(f"buffer_store_dwordx4 {vr(o,4)}, v11, s[16:19], s{38+rt} offen offset:{kp*1024}")
            else:
                Q.I(f"buffer_store_dwordx4 {vr(o,4)}, v12, s[16:19], s{38+rt} offen")
    Q.I("s_endpgm")
    A.extend(Q)

    F = A.fork()
    F.L("k1_f")
    tC = lambda mu: TF + mu * 12
    tS = lambda mu: TF + mu * 12 + 4
    tN = lambda mu: TF + mu * 12 + 8
    F.I("v_lshlrev_b32 v12, 8, v2")
    F.I("v_add_u32 v12, s29, v12")
    F.I("v_cvt_f32_u32 v12, v12")
    F.I(f"v_mul_f32 v12, {fhex(1/2048)}, v12")
    deltas = [(16 * (j >> 2) + (j & 3)) / 32 for j in range(8)]
    for mu in range(2):
        F.I(f"v_add_u32 v13, {16*mu}, v3")
        F.I("v_cvt_f32_u32 v13, v13")
        F.I("v_mul_f32 v14, v13, v12")
        gen_T(F, 13, 14, TMP, tC(mu), tS(mu), tN(mu), deltas)
    main(F, False, lambda ct: "0")
    XF = TMP
    DV = BB
    F.I("v_mul_u32_u24 v12, 0xa0000, v2")
    F.I("v_lshl_add_u32 v12, v3, 4, v12")
    F.I("s_mul_i32 s38, s21, 163840")
    F.I("s_lshl_b32 s39, s29, 8")
    F.I("s_add_u32 s38, s38, s39")
    F.I(f"s_add_u32 s38, s38, {WS_V}")
    for ct in range(10):
        for rt in range(2):
            for p in range(2):
                F.I(f"v_cvt_pk_bf16_f32 v{XF+ct*4+rt*2+p}, v{acc(rt,ct)+2*p}, v{acc(rt,ct)+2*p+1}")
    dv = lambda i5, ri, mu: DV + ((i5 * 2 + ri) * 2 + mu) * 4
    def vstore(i5):
        for ri in range(2):
            o = ACC + (i5 * 2 + ri) * 4
            for mu in range(2):
                for p in range(2):
                    r = dv(i5, ri, mu) + 2 * p
                    F.I(f"v_cvt_pk_bf16_f32 v{o+2*mu+p}, v{r}, v{r+1}")
            F.I(f"s_add_u32 s39, s38, {i5*32768 + ri*16384}")
            F.I(f"buffer_store_dwordx4 {vr(o,4)}, v12, s[16:19], s39 offen")
    for i5 in range(5):
        xr, xi = vr(XF + 8 * i5, 4), vr(XF + 8 * i5 + 4, 4)
        for mu in range(2):
            F.I(mfma(vr(dv(i5, 0, mu), 4), vr(tC(mu), 4), xr, "0"))
            F.I(mfma(vr(dv(i5, 1, mu), 4), vr(tC(mu), 4), xi, "0"))
        for mu in range(2):
            F.I(mfma(vr(dv(i5, 0, mu), 4), vr(tS(mu), 4), xi, vr(dv(i5, 0, mu), 4)))
            F.I(mfma(vr(dv(i5, 1, mu), 4), vr(tN(mu), 4), xr, vr(dv(i5, 1, mu), 4)))
        if i5 > 0:
            vstore(i5 - 1)
    vstore(4)
    F.I("s_cmp_lg_u32 s21, 0")
    F.I("s_cbranch_scc1 k1_end")
    xr, xi = vr(XF, 4), vr(XF + 4, 4)
    for sel, x in enumerate((xr, xi)):
        for ri in range(2):
            for mu in range(2):
                F.I(mfma(vr(dv(sel, ri, mu), 4), vr(tC(mu) if ri == 0 else tN(mu), 4), x, "0"))
    F.I("v_lshlrev_b32 v12, 12, v2")
    F.I("s_lshl_b32 s39, s29, 5")
    F.I(f"s_add_u32 s39, s39, {WS_VS}")
    F.I("s_mov_b32 s44, 0x00010001")
    F.I("s_mov_b32 s45, 0x00010001")
    for sel in range(2):
        for ri in range(2):
            o = 56 + (sel * 2 + ri) * 4
            for mu in range(2):
                for p in range(2):
                    r = dv(sel, ri, mu) + 2 * p
                    F.I(f"v_cvt_pk_bf16_f32 v{o+2*mu+p}, v{r}, v{r+1}")
    F.I("s_mov_b64 exec, s[44:45]")
    for sel in range(2):
        for ri in range(2):
            o = 56 + (sel * 2 + ri) * 4
            F.I(f"buffer_store_dwordx4 {vr(o,4)}, v12, s[16:19], s39 offen offset:{ri*2048+sel*16}")
    F.L("k1_end")
    F.I("s_endpgm")
    A.extend(F)
    return A.lines, dict(vgpr=416, accum=256, sgpr=64, lds=NSLOT * SLAB, grid=256, block=256)

def tables():
    cos = np.cos(2 * np.pi * np.arange(640) / 640); cos[np.abs(cos) < 1e-12] = 0
    cb = rbf_bits(cos)
    L = []
    for i in range(640):
        L.append(f".set C{i},{int(cb[i])}")
    L.append(".set C640,0x3f00"); L.append(".set C641,0xbf00")
    def e8(f):
        return "E8 " + ",".join(f"%({f(j)})" for j in range(8))
    L += [".altmacro",
          ".macro E8 a,b,c,d,e,f,g,h", ".short C\\a,C\\b,C\\c,C\\d,C\\e,C\\f,C\\g,C\\h", ".endm",
          ".macro R16 q,p,d",
          e8(lambda j: "\\q" if j == 0 else f"(\\p+{j}*\\d)%640"),
          e8(lambda j: f"(\\p+{j+8}*\\d)%640"),
          ".endm",
          ".p2align 8", "FTAB:", ".set dd,0", ".rept 640",
          "R16 0,0,%(dd)", "R16 %((320*dd)%640),160,%(dd)",
          ".set cc,16", ".rept 19",
          "R16 %((dd*cc)%640),%(dd*cc),%(dd)", "R16 %((dd*cc+160)%640),%(dd*cc+160),%(dd)", ".set cc,cc+16", ".endr",
          ".set dd,dd+1", ".endr"]
    L += [".macro G8 q0,q4,p,d",
          e8(lambda j: "\\q0" if j == 0 else ("\\q4" if j == 4 else f"(\\p+{j&3}*\\d+{160*(j>>2)})%640")),
          ".endm",
          ".p2align 8", "GTAB:", ".set n3,0", ".rept 8", ".set kk,0", ".rept 20", ".set ct,0", ".rept 5", ".set gg,0", ".rept 4",
          ".set dd,80*n3+16*ct", ".set cc,16*kk+4*gg", ".rept 16",
          ".if cc", "G8 %((cc*dd)%640),%((cc*dd+160)%640),%(cc*dd),%(dd)", ".else", "G8 640,%(640+(dd&1)),0,%(dd)", ".endif",
          ".set dd,dd+1", ".endr", ".set gg,gg+1", ".endr", ".set ct,ct+1", ".endr", ".set kk,kk+1", ".endr", ".set n3,n3+1", ".endr"]
    L += [".macro H8 p,d,o",
          e8(lambda j: f"(10*((\\p+{16*(j>>2)+(j&3)})*\\d)+\\o)%640"),
          ".endm",
          ".p2align 8", "ETAB:", ".set t4,0", ".rept 4", ".set kk,0", ".rept 2", ".set pp,0", ".rept 2", ".set gg,0", ".rept 4",
          ".set dd,16*t4", ".rept 16", "H8 %(32*kk+4*gg),%(dd),%(480*pp)", ".set dd,dd+1", ".endr",
          ".set gg,gg+1", ".endr", ".set pp,pp+1", ".endr", ".set kk,kk+1", ".endr", ".set t4,t4+1", ".endr",
          ".noaltmacro"]
    return L

def build(kernels, path):
    hdr = open("cdna_kernels/" + NAME + ".s.ref").read().split("; Override launch")[0]
    out = [hdr.rstrip()]
    body, descs = [], []
    for name, fn in kernels:
        lines, info = fn()
        lines, nn = pad_hazards(lines)
        print(name, "instr lines", len(lines), "nops inserted", nn, file=sys.stderr)
        out.append(f"; @launch kernel={name} grid=({info['grid']},1,1) block=({info['block']},1,1) lds={info['lds']}")
        body += [f".globl {name}", ".p2align 8", f".type {name},@function"] + lines
        descs += [".p2align 6", f".amdhsa_kernel {name}", f"  .amdhsa_next_free_vgpr {info['vgpr']}", f"  .amdhsa_next_free_sgpr {info['sgpr']}",
                  f"  .amdhsa_accum_offset {info['accum']}", "  .amdhsa_group_segment_fixed_size 0", "  .amdhsa_kernarg_size 80",
                  "  .amdhsa_user_sgpr_count 2", "  .amdhsa_user_sgpr_kernarg_segment_ptr 1", "  .amdhsa_system_sgpr_workgroup_id_x 1", ".end_amdhsa_kernel"]
    out += ['.amdgcn_target "amdgcn-amd-amdhsa--gfx950"', ".text"] + body + ['.section .rodata,"a"'] + descs + tables()
    open(path, "w").write("\n".join(out) + "\n")

if __name__ == "__main__":
    path = sys.argv[1] if len(sys.argv) > 1 else "cdna_kernels/" + NAME + ".s"
    ks = [("k1_kernel", k1)]
    try:
        from gen23 import k2, k3
        ks += [("k2_kernel", k2), ("k3_kernel", k3)]
    except ImportError:
        pass
    build(ks, path)
```
